```python
import torch

def _softmax(x, axis=-1):
    return torch.softmax(x, dim=axis)
def _gelu(x):
    return torch.nn.functional.gelu(x, approximate="tanh")
def _silu(x):
    return torch.nn.functional.silu(x)
def _sigmoid(x):
    return torch.sigmoid(x)
def _layernorm(x, axis=-1, eps=1e-5):
    m = x.mean(dim=axis, keepdim=True)
    v = x.var(dim=axis, keepdim=True, unbiased=False)
    return (x - m) / torch.sqrt(v + eps)
def _scatter_add(tgt, idx, src, axis=0):
    return tgt.clone().index_add_(axis, idx, src)
def _segment_sum(src, seg, n):
    out = torch.zeros((n,) + src.shape[1:], dtype=src.dtype)
    return out.index_add_(0, seg, src)
def _pad(x, pw):
    flat = tuple(v for pair in reversed(pw) for v in pair)
    return torch.nn.functional.pad(x, flat)

kernel_name = 'standalone__kv_cache_quant_int4_int2_kv_with_per_channel_or_per_token_scales__sampling'

def setup_inputs():

    _w = (lambda a: (lambda t: t.to(torch.bfloat16) if t.is_floating_point() else t)(torch.as_tensor(a)))
    B = 32
    Sq = 4
    Skv = 2048
    Hq = 32
    Hkv = 16
    Dh = 128
    bits = 8
    G = 64
    if G <= 0 or G >= Skv:
        G = max(1, Skv // 2)
    Skv = (Skv // G) * G
    ngk = Skv // G
    qmax = (1 << bits) - 1
    return {
        "q": _w((lambda *s: torch.randn(*s, dtype=torch.bfloat16) * 0.2)(B, Hq, Sq, Dh)),
        "qk": _w(torch.randint(0, qmax + 1, (B, Hkv, Skv, Dh)).to(torch.int32)),
        "qv": _w(torch.randint(0, qmax + 1, (B, Hkv, Skv, Dh)).to(torch.int32)),
        "k_scales": _w(torch.abs((lambda *s: torch.randn(*s, dtype=torch.bfloat16) * 0.2)(B, Hkv, ngk, Dh)) * 0.05 + 0.02),
        "k_zeros": _w((lambda *s: torch.randn(*s, dtype=torch.bfloat16) * 0.2)(B, Hkv, ngk, Dh) + float(qmax) / 2.0),
        "v_scales": _w(torch.abs((lambda *s: torch.randn(*s, dtype=torch.bfloat16) * 0.05)(B, Hkv, Skv, 1)) * 0.05 + 0.02),
        "v_zeros": _w((lambda *s: torch.randn(*s, dtype=torch.bfloat16) * 0.05)(B, Hkv, Skv, 1) + float(qmax) / 2.0),
    }

def reference(q, qk, qv, k_scales, k_zeros, v_scales, v_zeros):
    B, Hq, Sq, Dh = q.shape
    Hkv, Skv = qk.shape[1], qk.shape[2]
    ngk = k_scales.shape[2]
    G = Skv // ngk
    ks = (lambda x, n, axis: torch.repeat_interleave(x, n, dim=axis))(k_scales, G, axis=2)
    kz = (lambda x, n, axis: torch.repeat_interleave(x, n, dim=axis))(k_zeros, G, axis=2)
    k = ((lambda x, dt: x.to(dt))(qk, q.dtype) - kz) * ks
    v = ((lambda x, dt: x.to(dt))(qv, q.dtype) - v_zeros) * v_scales
    rep = Hq // Hkv
    if rep > 1:
        k = (lambda x, n, axis: torch.repeat_interleave(x, n, dim=axis))(k, rep, axis=1)
        v = (lambda x, n, axis: torch.repeat_interleave(x, n, dim=axis))(v, rep, axis=1)
    scale = float(Dh) ** -0.5
    logits = torch.einsum("bhqd,bhkd->bhqk", q, k) * scale
    p = _softmax(logits, axis=-1)
    o = torch.einsum("bhqk,bhkd->bhqd", p, v)
    return o
```

```python
import re


def vr(base, n=1):
    return f"v{base}" if n == 1 else f"v[{base}:{base+n-1}]"


def sr(base, n=1):
    return f"s{base}" if n == 1 else f"s[{base}:{base+n-1}]"


def rng(base, n):
    return list(range(base, base + n))


class Em:
    def __init__(self):
        self.lines = []
        self.pos = 0
        self.w_valu = {}
        self.w_trans = {}
        self.w_mfma = {}
        self.r_mfmac = {}
        self.w_sgpr_valu = {}
        self.w_m0 = -100
        self.st_data = {}
        self.n_inst = 0

    def raw(self, text):
        self.lines.append(text)

    def comment(self, text):
        self.lines.append("  ; " + text)

    def label(self, name):
        self.lines.append(name + ":")

    def _emit(self, text):
        self.lines.append("  " + text)
        self.pos += 1
        self.n_inst += 1

    def nop(self, n):
        while n > 0:
            k = min(n, 16)
            self.lines.append(f"  s_nop {k-1}")
            self.pos += k
            self.n_inst += 1
            n -= k

    def _need(self, reqs):
        need = 0
        for p, ws in reqs:
            have = self.pos - p - 1
            need = max(need, ws - have)
        if need > 0:
            self.nop(need)

    def flush(self):
        reqs = []
        for p in self.w_valu.values():
            reqs.append((p, 2))
        for p, _, _ in self.w_mfma.values():
            reqs.append((p, 8))
        for p in self.r_mfmac.values():
            reqs.append((p, 3))
        for p in self.w_sgpr_valu.values():
            reqs.append((p, 5))
        for p in self.st_data.values():
            reqs.append((p, 2))
        reqs.append((self.w_m0, 1))
        self._need(reqs)

    def valu(self, text, w=(), r=(), kind="valu", sw=(), srd=()):
        reqs = []
        for x in r:
            if x in self.w_mfma:
                reqs.append((self.w_mfma[x][0], 8))
            if kind != "trans" and x in self.w_trans:
                reqs.append((self.w_trans[x], 1))
            if kind in ("dpp", "perm") and x in self.w_valu:
                reqs.append((self.w_valu[x], 2))
            if kind == "readlane" and x in self.w_valu:
                reqs.append((self.w_valu[x], 1))
        for x in w:
            if x in self.w_mfma:
                reqs.append((self.w_mfma[x][0], 8))
            if x in self.r_mfmac:
                reqs.append((self.r_mfmac[x], 3))
            if x in self.st_data:
                reqs.append((self.st_data[x], 2))
        for s in srd:
            if s in self.w_sgpr_valu:
                reqs.append((self.w_sgpr_valu[s], 2))
        self._need(reqs)
        p = self.pos
        self._emit(text)
        for x in w:
            self.w_valu[x] = p
            self.w_mfma.pop(x, None)
            if kind == "trans":
                self.w_trans[x] = p
            else:
                self.w_trans.pop(x, None)
        for s in sw:
            self.w_sgpr_valu[s] = p

    def mfma16(self, d, a, b, c):
        reqs = []
        for x in rng(a, 4) + rng(b, 4):
            if x in self.w_valu:
                reqs.append((self.w_valu[x], 2))
            if x in self.w_mfma:
                reqs.append((self.w_mfma[x][0], 8))
        if c is not None:
            for x in rng(c, 4):
                if x in self.w_valu:
                    reqs.append((self.w_valu[x], 2))
                if x in self.w_mfma:
                    pp, db, dn = self.w_mfma[x]
                    if not (db == c and dn == 4):
                        reqs.append((pp, 6))
        for x in rng(d, 4):
            if x in self.w_mfma and not (c == d):
                reqs.append((self.w_mfma[x][0], 6))
        self._need(reqs)
        p = self.pos
        ctext = "0" if c is None else vr(c, 4)
        self._emit(f"v_mfma_f32_16x16x32_bf16 {vr(d,4)}, {vr(a,4)}, {vr(b,4)}, {ctext}")
        for x in rng(d, 4):
            self.w_mfma[x] = (p, d, 4)
            self.w_valu.pop(x, None)
            self.w_trans.pop(x, None)
        if c is not None:
            for x in rng(c, 4):
                self.r_mfmac[x] = p

    def mem(self, text, w=(), r=(), srd=(), m0=False, wide_store_data=()):
        reqs = []
        for x in list(r) + list(w):
            if x in self.w_mfma:
                reqs.append((self.w_mfma[x][0], 8))
        for x in w:
            if x in self.st_data:
                reqs.append((self.st_data[x], 1))
            if x in self.r_mfmac:
                reqs.append((self.r_mfmac[x], 3))
        for x in r:
            if x in self.w_trans:
                reqs.append((self.w_trans[x], 1))
        for s in srd:
            if s in self.w_sgpr_valu:
                reqs.append((self.w_sgpr_valu[s], 5))
        if m0:
            reqs.append((self.w_m0, 1))
        self._need(reqs)
        p = self.pos
        self._emit(text)
        for x in w:
            self.w_valu.pop(x, None)
            self.w_trans.pop(x, None)
            self.w_mfma.pop(x, None)
        for x in wide_store_data:
            self.st_data[x] = p

    def salu(self, text, m0=False, srd=()):
        reqs = []
        for s in srd:
            if s in self.w_sgpr_valu:
                reqs.append((self.w_sgpr_valu[s], 2))
        self._need(reqs)
        p = self.pos
        self._emit(text)
        if m0:
            self.w_m0 = p

    def text(self):
        return "\n".join(self.lines) + "\n"
```

```python
import sys, struct, math
from asmlib import Em, vr, sr, rng

KNAME = "standalone__kv_cache_quant_int4_int2_kv_with_per_channel_or_per_token_scales__sampling_kernel"

HEADER = """; Kernarg layout for this problem (80 bytes, ptrs only, base s[0:1]):
"""

def f2u(x):
    return struct.unpack("<I", struct.pack("<f", x))[0]

def gen(policy="nt", vgprs=256, smallpol="nt"):
    e = Em()
    LDS_KS, LDS_KZ, LDS_VS, LDS_VZ = 0, 8192, 16384, 20480
    LDS_O = 24576
    QSTR = 528
    WSTR = 8 * QSTR
    LDS_ML = LDS_O + 4 * WSTR
    LDS_TOTAL = LDS_ML + 256
    e.raw(HEADER.rstrip("\n"))
    e.raw(f"; @launch grid=(512,1,1) block=(256,1,1) lds={LDS_TOTAL}")
    e.raw('.amdgcn_target "amdgcn-amd-amdhsa--gfx950"')
    e.raw(".text")
    e.raw(f".globl {KNAME}")
    e.raw(".p2align 8")
    e.raw(f".type {KNAME},@function")
    e.label(KNAME)

    V_TID, V_LANE, V_KOFF, V_VOFF, V_AKS, V_AKZ, V_AVS, V_M0, V_M1 = 0, 1, 2, 3, 4, 5, 6, 7, 8
    V_M, V_L, V_T0, V_ALPHA, V_T1, V_NM, V_T2 = 9, 10, 11, 12, 13, 14, 15
    V_Q = 16
    V_QB = 32
    V_KSR = 40
    V_KZR = 48
    V_KZF = 56
    V_TMP = 72
    V_VSR = 88
    V_VSF = 92
    V_VZF = 96
    V_KA = 100
    V_D = 108
    V_S = 116
    V_P = 120
    V_PA = 124
    V_R = 128
    V_VA = 132
    V_O = 148
    V_RK = 164
    V_RV = 196
    V_E = 228

    S_WAVE = 3
    S_KOFF, S_VOFF, S_CNT, S_C1, S_NC1 = 4, 5, 6, 7, 8
    S_T0, S_T1, S_T2, S_T3 = 9, 10, 11, 12
    SRD_K, SRD_V, SRD_Q, SRD_KS, SRD_KZ, SRD_VS, SRD_VZ, SRD_O = 32, 36, 40, 44, 48, 52, 56, 60

    V = lambda t, w=(), r=(), **k: e.valu(t, w, r, **k)
    S = e.salu

    S("s_cmp_ge_u32 s2, 512")
    S("s_cbranch_scc1 L_done")
    S("s_load_dwordx16 s[16:31], s[0:1], 0")
    V(f"v_lshrrev_b32 v{V_T0}, 6, v0", [V_T0], [0])
    V(f"v_and_b32 v{V_LANE}, 63, v0", [V_LANE], [0])
    V(f"v_readfirstlane_b32 s{S_WAVE}, v{V_T0}", [], [V_T0], kind="readlane", sw=[S_WAVE])
    V(f"v_lshrrev_b32 v{V_T1}, 4, v{V_LANE}", [V_T1], [V_LANE])
    V(f"v_and_b32 v{V_T2}, 1, v{V_LANE}", [V_T2], [V_LANE])
    V(f"v_bfe_u32 v{V_T0}, v{V_LANE}, 1, 3", [V_T0], [V_LANE])
    V(f"v_lshlrev_b32 v{V_KOFF}, 9, v{V_T0}", [V_KOFF], [V_T0])
    V(f"v_lshl_add_u32 v{V_KOFF}, v{V_T1}, 5, v{V_KOFF}", [V_KOFF], [V_T1, V_KOFF])
    V(f"v_lshl_add_u32 v{V_KOFF}, v{V_T2}, 4, v{V_KOFF}", [V_KOFF], [V_T2, V_KOFF])
    V(f"v_and_b32 v{V_T0}, 15, v{V_LANE}", [V_T0], [V_LANE])
    V(f"v_lshlrev_b32 v{V_VOFF}, 10, v{V_T1}", [V_VOFF], [V_T1])
    V(f"v_lshl_add_u32 v{V_VOFF}, v{V_T0}, 4, v{V_VOFF}", [V_VOFF], [V_T0, V_VOFF])
    V(f"v_lshlrev_b32 v{V_AKZ}, 4, v{V_T1}", [V_AKZ], [V_T1])
    V(f"v_lshl_add_u32 v{V_AKZ}, v{V_T2}, 3, v{V_AKZ}", [V_AKZ], [V_T2, V_AKZ])
    V(f"v_add_u32 v{V_AKZ}, {LDS_KZ}, v{V_AKZ}", [V_AKZ], [V_AKZ])
    V(f"v_bfe_u32 v{V_T2}, v{V_LANE}, 3, 1", [V_T2], [V_LANE])
    V(f"v_lshlrev_b32 v{V_AKS}, 4, v{V_T1}", [V_AKS], [V_T1])
    V(f"v_lshl_add_u32 v{V_AKS}, v{V_T2}, 3, v{V_AKS}", [V_AKS], [V_T2, V_AKS])
    V(f"v_add_u32 v{V_M0}, -1, v{V_T2}", [V_M0], [V_T2])
    V(f"v_not_b32 v{V_M1}, v{V_M0}", [V_M1], [V_M0])
    V(f"v_and_b32 v{V_T0}, 7, v{V_LANE}", [V_T0], [V_LANE])
    V(f"v_lshl_add_u32 v{V_E}, v{V_T0}, 8, v{V_AKS}", [V_E], [V_T0, V_AKS])
    V(f"v_lshlrev_b32 v{V_E+1}, 4, v{V_LANE}", [V_E + 1], [V_LANE])
    S(f"s_lshl_b32 s{S_T0}, s{S_WAVE}, 4", srd=[S_WAVE])
    S(f"s_add_u32 s{S_T0}, s{S_T0}, {LDS_VS}")
    V(f"v_lshl_add_u32 v{V_AVS}, v{V_T1}, 2, s{S_T0}", [V_AVS], [V_T1])
    c1 = (128 ** -0.5) * math.log2(math.e)
    S(f"s_mov_b32 s{S_C1}, 0x{f2u(c1):08x}")
    S(f"s_mov_b32 s{S_NC1}, 0x{f2u(-c1):08x}")
    S(f"s_lshl_b32 s{S_KOFF}, s{S_WAVE}, 12")
    S(f"s_mov_b32 s{S_VOFF}, s{S_KOFF}")
    S(f"s_mov_b32 s{S_CNT}, 32")
    S(f"s_lshl_b32 s{S_T0}, s2, 20")
    S(f"s_lshr_b32 s{S_T1}, s2, 12")
    S(f"s_lshl_b32 s{S_T2}, s2, 13")
    S(f"s_lshl_b32 s{S_T3}, s2, 12")
    S(f"s_lshl_b32 s13, s2, 11")
    S("s_waitcnt lgkmcnt(0)")

    def srd(dst, ptr, off, nbytes, offhi=None):
        S(f"s_add_u32 s{dst}, s{ptr}, s{off}")
        S(f"s_addc_u32 s{dst+1}, s{ptr+1}, {('s%d' % offhi) if offhi is not None else 0}")
        S(f"s_and_b32 s{dst+1}, s{dst+1}, 0xffff")
        S(f"s_mov_b32 s{dst+2}, {nbytes}")
        S(f"s_mov_b32 s{dst+3}, 0x20000")

    srd(SRD_Q, 16, 13, 2048)
    for j in range(4):
        e.mem(f"buffer_load_dwordx2 {vr(V_TMP+2*j,2)}, v{V_E}, {sr(SRD_Q,4)}, 0 offen offset:{64*j} {smallpol}",
              w=rng(V_TMP + 2 * j, 2), r=[V_E])
    srd(SRD_KS, 22, S_T2, 8192)
    srd(SRD_KZ, 24, S_T2, 8192)
    S(f"s_lshl_b32 s14, s{S_WAVE}, 11")
    S(f"s_lshl_b32 s15, s{S_WAVE}, 10")
    S(f"s_add_u32 m0, s14, {LDS_KS}", m0=True)
    for i in range(2):
        e.mem(f"buffer_load_dwordx4 v{V_E+1}, {sr(SRD_KS,4)}, s14 offen offset:{1024*i} {smallpol} lds", r=[V_E + 1], m0=True)
    S(f"s_add_u32 m0, s14, {LDS_KZ}", m0=True)
    for i in range(2):
        e.mem(f"buffer_load_dwordx4 v{V_E+1}, {sr(SRD_KZ,4)}, s14 offen offset:{1024*i} {smallpol} lds", r=[V_E + 1], m0=True)
    srd(SRD_VS, 26, S_T3, 4096)
    srd(SRD_VZ, 28, S_T3, 4096)
    S(f"s_add_u32 m0, s15, {LDS_VS}", m0=True)
    e.mem(f"buffer_load_dwordx4 v{V_E+1}, {sr(SRD_VS,4)}, s15 offen {smallpol} lds", r=[V_E + 1], m0=True)
    S(f"s_add_u32 m0, s15, {LDS_VZ}", m0=True)
    e.mem(f"buffer_load_dwordx4 v{V_E+1}, {sr(SRD_VZ,4)}, s15 offen {smallpol} lds", r=[V_E + 1], m0=True)
    srd(SRD_K, 18, S_T0, 1 << 20, S_T1)
    srd(SRD_V, 20, S_T0, 1 << 20, S_T1)

    def kslot(c, j): return V_RK + 4 * (4 * c + j)
    def vslot(c, hh, b): return V_RV + 4 * (4 * c + 2 * hh + b)

    def kload(c, j):
        s = kslot(c, j)
        e.mem(f"buffer_load_dwordx4 {vr(s,4)}, v{V_KOFF}, {sr(SRD_K,4)}, s{S_KOFF} offen offset:{128*j} {policy}",
              w=rng(s, 4), r=[V_KOFF])
        if j == 3:
            S(f"s_add_u32 s{S_KOFF}, s{S_KOFF}, 16384")

    def vload(c, hh, b):
        s = vslot(c, hh, b)
        e.mem(f"buffer_load_dwordx4 {vr(s,4)}, v{V_VOFF}, {sr(SRD_V,4)}, s{S_VOFF} offen offset:{512*b+256*hh} {policy}",
              w=rng(s, 4), r=[V_VOFF])
        if hh == 1 and b == 1:
            S(f"s_add_u32 s{S_VOFF}, s{S_VOFF}, 16384")

    for c in range(2):
        for j in range(4):
            kload(c, j)
    for c in range(2):
        for hh in range(2):
            for b in range(2):
                vload(c, hh, b)
    srd(SRD_O, 30, 13, 2048)
    V(f"v_mov_b32 v{V_M}, 0xff800000", [V_M])
    V(f"v_mov_b32 v{V_L}, 0", [V_L])
    for i in range(16):
        V(f"v_mov_b32 v{V_O+i}, 0", [V_O + i])
    S("s_waitcnt vmcnt(16)")
    for j in range(4):
        for k in range(2):
            src = V_TMP + 2 * j + k
            V(f"v_lshlrev_b32 v{V_Q+4*j+2*k}, 16, v{src}", [V_Q + 4 * j + 2 * k], [src])
            V(f"v_and_b32 v{V_Q+4*j+2*k+1}, 0xffff0000, v{src}", [V_Q + 4 * j + 2 * k + 1], [src])
    S("s_barrier")

    def lds_reads():
        for jp in range(2):
            e.mem(f"ds_read2_b64 {vr(V_KSR+4*jp,4)}, v{V_AKS} offset0:{16*jp} offset1:{16*jp+8}",
                  w=rng(V_KSR + 4 * jp, 4), r=[V_AKS])
        for jp in range(2):
            e.mem(f"ds_read2_b64 {vr(V_KZR+4*jp,4)}, v{V_AKZ} offset0:{16*jp} offset1:{16*jp+8}",
                  w=rng(V_KZR + 4 * jp, 4), r=[V_AKZ])
        e.mem(f"ds_read2_b32 {vr(V_VSR,2)}, v{V_AVS} offset0:0 offset1:16", w=rng(V_VSR, 2), r=[V_AVS])
        e.mem(f"ds_read_b32 v{V_VSR+2}, v{V_AVS} offset:4096", w=[V_VSR + 2], r=[V_AVS])
        e.mem(f"ds_read_b32 v{V_VSR+3}, v{V_AVS} offset:{4096+64}", w=[V_VSR + 3], r=[V_AVS])
        V(f"v_add_u32 v{V_AKS}, 256, v{V_AKS}", [V_AKS], [V_AKS])
        V(f"v_add_u32 v{V_AKZ}, 256, v{V_AKZ}", [V_AKZ], [V_AKZ])
        V(f"v_add_u32 v{V_AVS}, 128, v{V_AVS}", [V_AVS], [V_AVS])

    lds_reads()
    e.flush()
    e.label("L_loop")
    S("s_waitcnt lgkmcnt(0)")
    for i in range(8):
        V(f"v_lshlrev_b32 v{V_TMP+2*i}, 16, v{V_KSR+i}", [V_TMP + 2 * i], [V_KSR + i])
        V(f"v_and_b32 v{V_TMP+2*i+1}, 0xffff0000, v{V_KSR+i}", [V_TMP + 2 * i + 1], [V_KSR + i])
    for i in range(8):
        V(f"v_lshlrev_b32 v{V_KZF+2*i}, 16, v{V_KZR+i}", [V_KZF + 2 * i], [V_KZR + i])
        V(f"v_and_b32 v{V_KZF+2*i+1}, 0xffff0000, v{V_KZR+i}", [V_KZF + 2 * i + 1], [V_KZR + i])
    for i in range(2):
        V(f"v_lshlrev_b32 v{V_VSF+2*i}, 16, v{V_VSR+i}", [V_VSF + 2 * i], [V_VSR + i])
        V(f"v_and_b32 v{V_VSF+2*i+1}, 0xffff0000, v{V_VSR+i}", [V_VSF + 2 * i + 1], [V_VSR + i])
        V(f"v_lshlrev_b32 v{V_VZF+2*i}, 16, v{V_VSR+2+i}", [V_VZF + 2 * i], [V_VSR + 2 + i])
        V(f"v_and_b32 v{V_VZF+2*i+1}, 0xffff0000, v{V_VSR+2+i}", [V_VZF + 2 * i + 1], [V_VSR + 2 + i])
    lds_reads()
    for i in range(8):
        t = V_TMP + 2 * i
        V(f"v_pk_mul_f32 {vr(t,2)}, {vr(t,2)}, {vr(V_Q+2*i,2)}", rng(t, 2), rng(t, 2) + rng(V_Q + 2 * i, 2))
    for i in range(8):
        t = V_TMP + 2 * i
        V(f"v_cvt_pk_bf16_f32 v{V_QB+i}, v{t}, v{t+1}", [V_QB + i], [t, t + 1])

    for c in range(2):
        for jj in range(2):
            S("s_waitcnt vmcnt(14)")
            ka = V_KA + 4 * jj
            for u in range(2):
                j = 2 * jj + u
                s = kslot(c, j)
                for x in range(4):
                    V(f"v_cvt_f32_i32 v{s+x}, v{s+x}", [s + x], [s + x])
                for x in range(2):
                    z = V_KZF + 4 * j + 2 * x
                    V(f"v_pk_add_f32 {vr(s+2*x,2)}, {vr(s+2*x,2)}, {vr(z,2)} neg_lo:[0,1] neg_hi:[0,1]",
                      rng(s + 2 * x, 2), rng(s + 2 * x, 2) + rng(z, 2))
                for x in range(2):
                    V(f"v_cvt_pk_bf16_f32 v{ka+2*u+x}, v{s+2*x}, v{s+2*x+1}", [ka + 2 * u + x], [s + 2 * x, s + 2 * x + 1])
            kload(c, 2 * jj)
            kload(c, 2 * jj + 1)
            d = V_D + 4 * c
            e.mfma16(d, ka, V_QB + 4 * jj, None if jj == 0 else d)

    for c in range(2):
        d = V_D + 4 * c
        for b in range(2):
            sreg = V_S + 2 * c + b
            V(f"v_add_f32_dpp v{sreg}, v{d+2*b+1}, v{d+2*b} row_ror:8 row_mask:0xf bank_mask:0x3",
              [sreg], [d + 2 * b, d + 2 * b + 1], kind="dpp")
            V(f"v_add_f32_dpp v{sreg}, v{d+2*b}, v{d+2*b+1} row_ror:8 row_mask:0xf bank_mask:0xc",
              [sreg], [d + 2 * b, d + 2 * b + 1], kind="dpp")
    V(f"v_max3_f32 v{V_T0}, v{V_S}, v{V_S+1}, v{V_S+2}", [V_T0], rng(V_S, 3))
    V(f"v_max3_f32 v{V_T0}, v{V_T0}, v{V_S+3}, v{V_M}", [V_T0], [V_T0, V_S + 3, V_M])
    V(f"v_mov_b32 v{V_T1}, v{V_T0}", [V_T1], [V_T0])
    V(f"v_permlane32_swap_b32 v{V_T0}, v{V_T1}", [V_T0, V_T1], [V_T0, V_T1], kind="perm")
    V(f"v_max_f32 v{V_T0}, v{V_T0}, v{V_T1}", [V_T0], [V_T0, V_T1])
    V(f"v_mov_b32 v{V_T1}, v{V_T0}", [V_T1], [V_T0])
    V(f"v_permlane16_swap_b32 v{V_T0}, v{V_T1}", [V_T0, V_T1], [V_T0, V_T1], kind="perm")
    V(f"v_max_f32 v{V_T0}, v{V_T0}, v{V_T1}", [V_T0], [V_T0, V_T1])
    V(f"v_mul_f32 v{V_NM}, s{S_NC1}, v{V_T0}", [V_NM], [V_T0])
    V(f"v_fma_f32 v{V_ALPHA}, v{V_M}, s{S_C1}, v{V_NM}", [V_ALPHA], [V_M, V_NM])
    V(f"v_mov_b32 v{V_M}, v{V_T0}", [V_M], [V_T0])
    V(f"v_exp_f32 v{V_ALPHA}, v{V_ALPHA}", [V_ALPHA], [V_ALPHA], kind="trans")
    for i in range(4):
        V(f"v_fma_f32 v{V_P+i}, v{V_S+i}, s{S_C1}, v{V_NM}", [V_P + i], [V_S + i, V_NM])
    for i in range(4):
        V(f"v_exp_f32 v{V_P+i}, v{V_P+i}", [V_P + i], [V_P + i], kind="trans")
    for i in range(8):
        o = V_O + 2 * i
        V(f"v_pk_mul_f32 {vr(o,2)}, {vr(o,2)}, {vr(V_ALPHA,2)} op_sel_hi:[1,0]", rng(o, 2), rng(o, 2) + [V_ALPHA])
    V(f"v_add_f32 v{V_T0}, v{V_P}, v{V_P+1}", [V_T0], [V_P, V_P + 1])
    V(f"v_add_f32 v{V_T1}, v{V_P+2}, v{V_P+3}", [V_T1], [V_P + 2, V_P + 3])
    V(f"v_add_f32 v{V_T0}, v{V_T0}, v{V_T1}", [V_T0], [V_T0, V_T1])
    V(f"v_fma_f32 v{V_L}, v{V_L}, v{V_ALPHA}, v{V_T0}", [V_L], [V_L, V_ALPHA, V_T0])
    for i in range(2):
        p = V_P + 2 * i
        V(f"v_pk_mul_f32 {vr(p,2)}, {vr(p,2)}, {vr(V_VSF+2*i,2)}", rng(p, 2), rng(p, 2) + rng(V_VSF + 2 * i, 2))
    for i in range(2):
        p = V_P + 2 * i
        V(f"v_cvt_pk_bf16_f32 v{V_PA+i}, v{p}, v{p+1}", [V_PA + i], [p, p + 1])
    for hh in range(2):
        for c in range(2):
            mk = V_M0 if hh == 0 else V_M1
            V(f"v_and_b32 v{V_R+2*hh+c}, v{V_PA+c}, v{mk}", [V_R + 2 * hh + c], [V_PA + c, mk])

    for c in range(2):
        for hh in range(2):
            S("s_waitcnt vmcnt(14)")
            for b in range(2):
                s = vslot(c, hh, b)
                for x in range(4):
                    V(f"v_cvt_f32_i32 v{s+x}, v{s+x}", [s + x], [s + x])
                z = V_VZF + 2 * c
                sel = "op_sel_hi:[1,0]" if b == 0 else "op_sel:[0,1] op_sel_hi:[1,1]"
                for x in range(2):
                    V(f"v_pk_add_f32 {vr(s+2*x,2)}, {vr(s+2*x,2)}, {vr(z,2)} {sel} neg_lo:[0,1] neg_hi:[0,1]",
                      rng(s + 2 * x, 2), rng(s + 2 * x, 2) + [z + b])
            s0, s1 = vslot(c, hh, 0), vslot(c, hh, 1)
            for j in range(4):
                a = V_VA + 4 * j + 2 * hh + c
                V(f"v_cvt_pk_bf16_f32 v{a}, v{s0+j}, v{s1+j}", [a], [s0 + j, s1 + j])
            vload(c, hh, 0)
            vload(c, hh, 1)
    for j in range(4):
        e.mfma16(V_O + 4 * j, V_VA + 4 * j, V_R, V_O + 4 * j)
    S(f"s_sub_u32 s{S_CNT}, s{S_CNT}, 1")
    S(f"s_cmp_lg_u32 s{S_CNT}, 0")
    st = e.pos
    S("s_cbranch_scc1 L_loop")

    V(f"v_mov_b32 v{V_T1}, v{V_L}", [V_T1], [V_L])
    V(f"v_permlane32_swap_b32 v{V_L}, v{V_T1}", [V_L, V_T1], [V_L, V_T1], kind="perm")
    V(f"v_add_f32 v{V_L}, v{V_L}, v{V_T1}", [V_L], [V_L, V_T1])
    V(f"v_mov_b32 v{V_T1}, v{V_L}", [V_T1], [V_L])
    V(f"v_permlane16_swap_b32 v{V_L}, v{V_T1}", [V_L, V_T1], [V_L, V_T1], kind="perm")
    V(f"v_add_f32 v{V_L}, v{V_L}, v{V_T1}", [V_L], [V_L, V_T1])
    V(f"v_and_b32 v{V_T0}, 7, v{V_LANE}", [V_T0], [V_LANE])
    S(f"s_lshl_b32 s{S_T0}, s{S_WAVE}, 2")
    S(f"s_add_u32 s{S_T0}, s{S_T0}, {LDS_ML}")
    V(f"v_lshl_add_u32 v{V_E}, v{V_T0}, 4, s{S_T0}", [V_E], [V_T0])
    S(f"s_mul_i32 s{S_T1}, s{S_WAVE}, {WSTR}")
    S(f"s_add_u32 s{S_T1}, s{S_T1}, {LDS_O}")
    V(f"v_mul_u32_u24 v{V_E+1}, {QSTR}, v{V_T0}", [V_E + 1], [V_T0])
    V(f"v_bfe_u32 v{V_T2}, v{V_LANE}, 3, 1", [V_T2], [V_LANE])
    V(f"v_lshl_add_u32 v{V_E+1}, v{V_T2}, 8, v{V_E+1}", [V_E + 1], [V_T2, V_E + 1])
    V(f"v_lshrrev_b32 v{V_T2}, 4, v{V_LANE}", [V_T2], [V_LANE])
    V(f"v_lshl_add_u32 v{V_E+1}, v{V_T2}, 6, v{V_E+1}", [V_E + 1], [V_T2, V_E + 1])
    V(f"v_add_u32 v{V_E+1}, s{S_T1}, v{V_E+1}", [V_E + 1], [V_E + 1])
    e.mem(f"ds_write_b32 v{V_E}, v{V_M}", r=[V_E, V_M])
    e.mem(f"ds_write_b32 v{V_E}, v{V_L} offset:128", r=[V_E, V_L])
    T = V_TMP
    for r_ in range(4):
        for j in range(4):
            V(f"v_mov_b32 v{T+4*r_+j}, v{V_O+4*j+r_}", [T + 4 * r_ + j], [V_O + 4 * j + r_])
    for r_ in range(4):
        e.mem(f"ds_write_b128 v{V_E+1}, {vr(T+4*r_,4)} offset:{16*r_}", r=[V_E + 1] + rng(T + 4 * r_, 4))
    V(f"v_lshrrev_b32 v{V_T0}, 5, v0", [V_T0], [0])
    V(f"v_and_b32 v{V_T1}, 31, v0", [V_T1], [0])
    V(f"v_mul_u32_u24 v{V_E+2}, {QSTR}, v{V_T0}", [V_E + 2], [V_T0])
    V(f"v_lshl_add_u32 v{V_E+2}, v{V_T1}, 4, v{V_E+2}", [V_E + 2], [V_T1, V_E + 2])
    V(f"v_lshlrev_b32 v{V_E+3}, 4, v{V_T0}", [V_E + 3], [V_T0])
    V(f"v_lshlrev_b32 v{V_E+4}, 3, v0", [V_E + 4], [0])
    S("s_waitcnt lgkmcnt(0)")
    S("s_barrier")
    MM, LL, OO = V_KZF, V_KZF + 4, V_VA
    e.mem(f"ds_read_b128 {vr(MM,4)}, v{V_E+3} offset:{LDS_ML}", w=rng(MM, 4), r=[V_E + 3])
    e.mem(f"ds_read_b128 {vr(LL,4)}, v{V_E+3} offset:{LDS_ML+128}", w=rng(LL, 4), r=[V_E + 3])
    for w_ in range(4):
        e.mem(f"ds_read_b128 {vr(OO+4*w_,4)}, v{V_E+2} offset:{LDS_O+w_*WSTR}", w=rng(OO + 4 * w_, 4), r=[V_E + 2])
    S("s_waitcnt lgkmcnt(5)")
    V(f"v_max3_f32 v{V_T0}, v{MM}, v{MM+1}, v{MM+2}", [V_T0], rng(MM, 3))
    V(f"v_max_f32 v{V_T0}, v{V_T0}, v{MM+3}", [V_T0], [V_T0, MM + 3])
    V(f"v_mul_f32 v{V_NM}, s{S_NC1}, v{V_T0}", [V_NM], [V_T0])
    for w_ in range(4):
        V(f"v_fma_f32 v{MM+w_}, v{MM+w_}, s{S_C1}, v{V_NM}", [MM + w_], [MM + w_, V_NM])
    for w_ in range(4):
        V(f"v_exp_f32 v{MM+w_}, v{MM+w_}", [MM + w_], [MM + w_], kind="trans")
    S("s_waitcnt lgkmcnt(4)")
    V(f"v_mul_f32 v{V_T0}, v{MM}, v{LL}", [V_T0], [MM, LL])
    for w_ in range(1, 4):
        V(f"v_fma_f32 v{V_T0}, v{MM+w_}, v{LL+w_}, v{V_T0}", [V_T0], [MM + w_, LL + w_, V_T0])
    V(f"v_rcp_f32 v{V_T0}, v{V_T0}", [V_T0], [V_T0], kind="trans")
    for w_ in range(4):
        V(f"v_mul_f32 v{MM+w_}, v{MM+w_}, v{V_T0}", [MM + w_], [MM + w_, V_T0])
    S("s_waitcnt lgkmcnt(0)")
    R = V_P
    for x in range(4):
        V(f"v_mul_f32 v{R+x}, v{MM}, v{OO+x}", [R + x], [MM, OO + x])
    for w_ in range(1, 4):
        for x in range(4):
            V(f"v_fma_f32 v{R+x}, v{MM+w_}, v{OO+4*w_+x}, v{R+x}", [R + x], [MM + w_, OO + 4 * w_ + x, R + x])
    V(f"v_cvt_pk_bf16_f32 v{V_PA}, v{R}, v{R+1}", [V_PA], [R, R + 1])
    V(f"v_cvt_pk_bf16_f32 v{V_PA+1}, v{R+2}, v{R+3}", [V_PA + 1], [R + 2, R + 3])
    e.mem(f"buffer_store_dwordx2 {vr(V_PA,2)}, v{V_E+4}, {sr(SRD_O,4)}, 0 offen", r=[V_E + 4, V_PA, V_PA + 1])
    e.label("L_done")
    S("s_endpgm")
    e.raw('.section .rodata,"a"')
    e.raw(".p2align 6")
    e.raw(f".amdhsa_kernel {KNAME}")
    e.raw(f"  .amdhsa_next_free_vgpr {vgprs}")
    e.raw("  .amdhsa_next_free_sgpr 72")
    e.raw(f"  .amdhsa_accum_offset {vgprs}")
    e.raw("  .amdhsa_group_segment_fixed_size 0")
    e.raw("  .amdhsa_kernarg_size 80")
    e.raw("  .amdhsa_user_sgpr_count 2")
    e.raw("  .amdhsa_user_sgpr_kernarg_segment_ptr 1")
    e.raw("  .amdhsa_system_sgpr_workgroup_id_x 1")
    e.raw(".end_amdhsa_kernel")
    return e.text()

if __name__ == "__main__":
    out = sys.argv[1] if len(sys.argv) > 1 else "k_v1.s"
    open(out, "w").write(gen())
    print("wrote", out)
```

```python
import sys
KNAME = "standalone__kv_cache_quant_int4_int2_kv_with_per_channel_or_per_token_scales__sampling_kernel"

def header(A, nwg, waves, lds):
    A(f"; @launch grid=({nwg},1,1) block=({waves*64},1,1) lds={lds}")
    A('.amdgcn_target "amdgcn-amd-amdhsa--gfx950"')
    A(".text")
    A(f".globl {KNAME}")
    A(".p2align 8")
    A(f".type {KNAME},@function")
    A(f"{KNAME}:")

def footer(A, vgprs):
    A("L_done:")
    A("  s_endpgm")
    A('.section .rodata,"a"')
    A(".p2align 6")
    A(f".amdhsa_kernel {KNAME}")
    A(f"  .amdhsa_next_free_vgpr {vgprs}")
    A("  .amdhsa_next_free_sgpr 64")
    A(f"  .amdhsa_accum_offset {min(256,(vgprs+3)//4*4)}")
    A("  .amdhsa_group_segment_fixed_size 0")
    A("  .amdhsa_kernarg_size 80")
    A("  .amdhsa_user_sgpr_count 2")
    A("  .amdhsa_user_sgpr_kernarg_segment_ptr 1")
    A("  .amdhsa_system_sgpr_workgroup_id_x 1")
    A(".end_amdhsa_kernel")

def gen_empty(nwg=512, waves=8, vgprs=128):
    L = []; A = L.append
    header(A, nwg, waves, 0)
    footer(A, vgprs)
    return "\n".join(L) + "\n"

def gen(nwg=512, waves=8, depth=16, policy="nt", vgprs=128, ch=32768, order="sweep", kv="alt", lds=0, xcdswz=0):
    NW = nwg * waves
    L = []; A = L.append
    header(A, nwg, waves, lds)
    A(f"  s_cmp_ge_u32 s2, {nwg}")
    A("  s_cbranch_scc1 L_done")
    A("  s_load_dwordx4 s[4:7], s[0:1], 8")
    A("  v_lshrrev_b32 v1, 6, v0")
    A("  v_and_b32 v2, 63, v0")
    A("  s_nop 0")
    A("  v_readfirstlane_b32 s3, v1")
    A(f"  v_lshlrev_b32 v5, 4, v2")
    A("  v_mov_b32 v7, 0")
    if xcdswz:
        A("  s_and_b32 s16, s2, 7")
        A(f"  s_mul_i32 s16, s16, {nwg//8}")
        A("  s_lshr_b32 s17, s2, 3")
        A("  s_add_u32 s2, s16, s17")
    A(f"  s_mul_i32 s16, s2, {waves}")
    A("  s_add_u32 s16, s16, s3")
    A("  s_waitcnt lgkmcnt(0)")
    A("  s_mov_b32 s8, s4")
    A("  s_and_b32 s9, s5, 0xffff")
    A(f"  s_mov_b32 s10, 0x20000000")
    A("  s_mov_b32 s11, 0x20000")
    A("  s_mov_b32 s12, s6")
    A("  s_and_b32 s13, s7, 0xffff")
    A(f"  s_mov_b32 s14, 0x20000000")
    A("  s_mov_b32 s15, 0x20000")
    A(f"  s_mul_i32 s18, s16, {ch}")
    A("  s_mov_b32 s19, s18")
    lpc = ch // 1024
    nsteps = (1 << 29) // (ch * NW)
    total_loads = nsteps * lpc * 2
    body = 64
    assert total_loads % body == 0
    iters = total_loads // body
    base = 8
    def slot(i): return base + 4 * (i % depth)
    stride_extra = (NW - 1) * ch
    if kv == "alt":
        def load(idx):
            j = idx % body
            c = j // lpc
            i = j % lpc
            isv = c & 1
            s = slot(idx)
            srd = "s[12:15]" if isv else "s[8:11]"
            so = "s19" if isv else "s18"
            imm = (i % 4) * 1024
            A(f"  buffer_load_dwordx4 v[{s}:{s+3}], v5, {srd}, {so} offen offset:{imm} {policy}")
            adv = 0
            if i % 4 == 3 or i == lpc - 1: adv = min(4096, ch)
            if i == lpc - 1: adv += stride_extra
            if adv: A(f"  s_add_u32 {so}, {so}, {adv}")
        assert body % (2 * lpc) == 0
        A(f"  s_mov_b32 s22, {iters}")
        for i in range(depth): load(i)
        A("L_loop:")
        for i in range(body):
            A(f"  s_waitcnt vmcnt({depth-1})")
            A(f"  v_xor_b32 v7, v7, v{slot(i)}")
            load(i + depth)
        A("  s_sub_u32 s22, s22, 1")
        A("  s_cmp_lg_u32 s22, 0")
        A("  s_cbranch_scc1 L_loop")
    else:
        A("  s_mov_b32 s24, s8")
        A("  s_mov_b32 s25, s9")
        A("  s_mov_b32 s26, s10")
        A("  s_mov_b32 s27, 0x20000")
        A("  s_mov_b32 s23, 0")
        def load(idx):
            j = idx % body
            i = j % lpc
            s = slot(idx)
            imm = (i % 4) * 1024
            A(f"  buffer_load_dwordx4 v[{s}:{s+3}], v5, s[24:27], s18 offen offset:{imm} {policy}")
            adv = 0
            if i % 4 == 3 or i == lpc - 1: adv = min(4096, ch)
            if i == lpc - 1: adv += stride_extra
            if adv: A(f"  s_add_u32 s18, s18, {adv}")
            if i == lpc - 1:
                A("  s_cmp_ge_u32 s18, s10")
                A("  s_cselect_b32 s24, s12, s24")
                A("  s_cselect_b32 s25, s13, s25")
                A("  s_cselect_b32 s18, s19, s18")
                A("  s_cselect_b32 s19, s10, s19")
        assert body % lpc == 0
        A(f"  s_mov_b32 s22, {iters}")
        for i in range(depth): load(i)
        A("L_loop:")
        for i in range(body):
            A(f"  s_waitcnt vmcnt({depth-1})")
            A(f"  v_xor_b32 v7, v7, v{slot(i)}")
            load(i + depth)
        A("  s_sub_u32 s22, s22, 1")
        A("  s_cmp_lg_u32 s22, 0")
        A("  s_cbranch_scc1 L_loop")
    A("  s_waitcnt vmcnt(0)")
    footer(A, vgprs)
    return "\n".join(L) + "\n"

if __name__ == "__main__":
    cfgs = {
        "t_sw32k": dict(ch=32768),
        "t_sw4k": dict(ch=4096),
        "t_sw1k": dict(ch=1024),
        "t_sw8k": dict(ch=8192),
        "t_sw32k_seq": dict(ch=32768, kv="seq"),
        "t_sw4k_seq": dict(ch=4096, kv="seq"),
        "t_sw1k_seq": dict(ch=1024, kv="seq"),
        "t_sw4k_x": dict(ch=4096, xcdswz=1),
        "t_sw32k_x": dict(ch=32768, xcdswz=1),
        "t_sw4k_w4_256": dict(ch=4096, nwg=256, waves=4, depth=32, vgprs=256),
        "t_sw4k_w8_256": dict(ch=4096, nwg=256, waves=8, depth=16, vgprs=256),
        "t_sw4k_w4_1024": dict(ch=4096, nwg=1024, waves=4, depth=16, vgprs=128),
        "t_sw4k_w4_2048": dict(ch=4096, nwg=2048, waves=4, depth=8, vgprs=64),
        "t_sw4k_w4_256_d8": dict(ch=4096, nwg=256, waves=4, depth=8, vgprs=256),
    }
    names = []
    for n, c in cfgs.items():
        open(f"work/{n}.s", "w").write(gen(**c)); names.append(n)
    open("t_empty.s", "w").write(gen_empty()); names.append("t_empty")
    print(" ".join(f"work/{n}.s" for n in names))
    import json
    print(json.dumps([f"work/{n}.s" for n in names]))
```

```python
import sys, json
from gen_stream2 import header, KNAME

def footer(A, vgprs):
    A("L_done:")
    A("  s_endpgm")
    A('.section .rodata,"a"')
    A(".p2align 6")
    A(f".amdhsa_kernel {KNAME}")
    A(f"  .amdhsa_next_free_vgpr {vgprs}")
    A("  .amdhsa_next_free_sgpr 96")
    A(f"  .amdhsa_accum_offset {min(256,(vgprs+3)//4*4)}")
    A("  .amdhsa_group_segment_fixed_size 0")
    A("  .amdhsa_kernarg_size 80")
    A("  .amdhsa_user_sgpr_count 2")
    A("  .amdhsa_user_sgpr_kernarg_segment_ptr 1")
    A("  .amdhsa_system_sgpr_workgroup_id_x 1")
    A(".end_amdhsa_kernel")

def gen(nwg=256, waves=4, depth=16, policy="nt", vgprs=256, ch=4096, R=1, lds=90000, xcdswz=0, kvgran=2):
    NW = nwg * waves
    wpr = NW // R
    regsz = (1 << 29) // R
    L = []; A = L.append
    header(A, nwg, waves, lds)
    A(f"  s_cmp_ge_u32 s2, {nwg}")
    A("  s_cbranch_scc1 L_done")
    A("  s_load_dwordx4 s[4:7], s[0:1], 8")
    A("  s_load_dwordx2 s[80:81], s[0:1], 72")
    A("  s_memrealtime s[72:73]")
    A("  s_mov_b32 s70, s2")
    A("  v_lshrrev_b32 v1, 6, v0")
    A("  v_and_b32 v2, 63, v0")
    A("  s_nop 0")
    A("  v_readfirstlane_b32 s3, v1")
    A(f"  v_lshlrev_b32 v5, 4, v2")
    A("  v_mov_b32 v7, 0")
    A("  v_mov_b32 v250, 0")
    if xcdswz:
        A("  s_and_b32 s16, s2, 7")
        A(f"  s_mul_i32 s16, s16, {nwg//8}")
        A("  s_lshr_b32 s17, s2, 3")
        A("  s_add_u32 s2, s16, s17")
    A(f"  s_mul_i32 s16, s2, {waves}")
    A("  s_add_u32 s16, s16, s3")
    lw = wpr.bit_length() - 1
    assert 1 << lw == wpr
    A(f"  s_lshr_b32 s17, s16, {lw}")
    A(f"  s_and_b32 s16, s16, {wpr-1}")
    A(f"  s_mul_i32 s17, s17, {regsz}")
    A("  s_waitcnt lgkmcnt(0)")
    A("  s_add_u32 s8, s4, s17")
    A("  s_addc_u32 s9, s5, 0")
    A("  s_and_b32 s9, s9, 0xffff")
    A(f"  s_mov_b32 s10, {regsz}")
    A("  s_mov_b32 s11, 0x20000")
    A("  s_add_u32 s12, s6, s17")
    A("  s_addc_u32 s13, s7, 0")
    A("  s_and_b32 s13, s13, 0xffff")
    A(f"  s_mov_b32 s14, {regsz}")
    A("  s_mov_b32 s15, 0x20000")
    A(f"  s_mul_i32 s18, s16, {ch}")
    A("  s_mov_b32 s19, s18")
    lpc = ch // 1024
    nsteps = regsz // (ch * wpr)
    total_loads = nsteps * lpc * 2
    body = max(64, 2 * lpc * kvgran)
    assert total_loads % body == 0 and body % depth == 0
    iters = total_loads // body
    base = 8
    def slot(i): return base + 4 * (i % depth)
    stride_extra = (wpr - 1) * ch
    def load(idx):
        j = idx % body
        c = j // lpc
        i = j % lpc
        isv = (c // kvgran) & 1
        s = slot(idx)
        srd = "s[12:15]" if isv else "s[8:11]"
        so = "s19" if isv else "s18"
        imm = (i % 4) * 1024
        A(f"  buffer_load_dwordx4 v[{s}:{s+3}], v5, {srd}, {so} offen offset:{imm} {policy}")
        adv = 0
        if i % 4 == 3 or i == lpc - 1: adv = min(4096, ch)
        if i == lpc - 1: adv += stride_extra
        if adv: A(f"  s_add_u32 {so}, {so}, {adv}")
    A(f"  s_mov_b32 s22, {iters}")
    for i in range(depth): load(i)
    A("  s_mov_b32 m0, 0")
    A(f"  s_waitcnt vmcnt({depth-1})")
    A("  s_memrealtime s[74:75]")
    A("L_loop:")
    for i in range(body):
        if i % 16 == 0:
            A("  s_memrealtime s[88:89]")
        A(f"  s_waitcnt vmcnt({depth-1})")
        A(f"  v_xor_b32 v7, v7, v{slot(i)}")
        load(i + depth)
        if i % 16 == 1:
            A("  s_waitcnt lgkmcnt(0)")
            A("  v_writelane_b32 v250, s88, m0")
            A("  s_add_u32 m0, m0, 1")
    A("  s_sub_u32 s22, s22, 1")
    A("  s_cmp_lg_u32 s22, 0")
    A("  s_cbranch_scc1 L_loop")
    A("  s_memrealtime s[76:77]")
    A("  s_memrealtime s[78:79]")
    A("  s_getreg_b32 s82, hwreg(HW_REG_HW_ID)")
    A("  s_getreg_b32 s83, hwreg(HW_REG_XCC_ID)")
    A("  s_waitcnt vmcnt(0) lgkmcnt(0)")
    A("  s_mov_b32 s84, s80")
    A("  s_and_b32 s85, s81, 0xffff")
    A("  s_mov_b32 s86, 0x100000")
    A("  s_mov_b32 s87, 0x20000")
    A(f"  s_mul_i32 s30, s70, {waves}")
    A(f"  s_add_u32 s30, s30, s3")
    A(f"  s_lshl_b32 s30, s30, 5")
    for i, sreg in enumerate([72, 74, 76, 78, 82, 83]):
        A(f"  v_mov_b32 v{8+i}, s{sreg}")
    A("  v_mov_b32 v1, 0")
    A("  buffer_store_dwordx4 v[8:11], v1, s[84:87], s30 offen")
    A("  buffer_store_dwordx2 v[12:13], v1, s[84:87], s30 offen offset:16")
    A("  s_lshl_b32 s30, s30, 3")
    A("  s_add_u32 s30, s30, 0x10000")
    A("  v_lshlrev_b32 v1, 2, v2")
    A("  buffer_store_dword v250, v1, s[84:87], s30 offen")
    footer(A, vgprs)
    return "\n".join(L) + "\n"

def emit(cfgs):
    names = []
    for n, c in cfgs.items():
        open(f"work/{n}.s", "w").write(gen(**c)); names.append(n)
    print(" ".join(f"work/{n}.s" for n in names))
    print(json.dumps(["work/bench.py", "work/scrub.s", "cdna_kernels/cdna_launch.py", "cdna_kernels/cdna_unwritten_srd_check.py"] + [f"work/{n}.s" for n in names]))

if __name__ == "__main__":
    cfgs = {
        "y_R256_st": dict(R=256),
        "y_R1_st": dict(R=1),
        "y_R32_st": dict(R=32),
        "y_R256x_st": dict(R=256, xcdswz=1),
        "y_R1024c32k_st": dict(R=1024, ch=4096, kvgran=8),
        "y_R256_d8_st": dict(R=256, depth=8),
        "y_R256_d32_st": dict(R=256, depth=32),
    }
    emit(cfgs)
```

```python
import sys, json
from gen_stream2 import header, KNAME
from gen_stream5 import footer

def gen(W=4, B=8, pre=64, post=55, policy="nt", lds=90000, bar=False, nwg=256, lin=False, rot=0, rotsh=0, rotmask=63):
    L = []; A = L.append
    header(A, nwg, W, lds)
    reg = (1 << 29) // nwg
    A(f"  s_cmp_ge_u32 s2, {nwg}")
    A("  s_cbranch_scc1 L_done")
    A("  s_load_dwordx4 s[4:7], s[0:1], 8")
    A("  s_load_dwordx2 s[80:81], s[0:1], 72")
    A("  s_memrealtime s[72:73]")
    A("  s_mov_b32 s70, s2")
    A("  v_lshrrev_b32 v1, 6, v0")
    A("  v_and_b32 v2, 63, v0")
    A("  s_nop 0")
    A("  v_readfirstlane_b32 s3, v1")
    A("  v_lshrrev_b32 v3, 4, v2")
    A("  v_and_b32 v4, 1, v2")
    A("  v_bfe_u32 v200, v2, 1, 3")
    A("  v_lshlrev_b32 v200, 9, v200")
    A("  v_lshl_add_u32 v200, v3, 5, v200")
    A("  v_lshl_add_u32 v200, v4, 4, v200")
    A("  v_lshlrev_b32 v3, 10, v3")
    A("  v_and_b32 v4, 15, v2")
    A("  v_lshl_add_u32 v201, v4, 4, v3")
    if lin:
        A("  v_lshlrev_b32 v200, 4, v2")
        A("  v_lshlrev_b32 v201, 4, v2")
    ko = [1024 * j for j in range(4)] if lin else [128 * j for j in range(4)]
    vo = [1024 * j for j in range(4)] if lin else [0, 512, 256, 768]
    for j in range(4): A(f"  v_add_u32 v{210+j}, {ko[j]}, v200")
    A("  v_mov_b32 v7, 0")
    A("  v_mov_b32 v250, 0")
    A(f"  s_mul_i32 s17, s2, {reg}")
    A(f"  s_mul_i32 s41, s3, {B*1024}")
    if rot:
        A(f"  s_lshr_b32 s45, s2, {rotsh}")
        A(f"  s_mul_i32 s45, s45, {rot}")
        A(f"  s_and_b32 s45, s45, {rotmask}")
        A(f"  s_lshl_b32 s45, s45, 15")
        A("  s_add_u32 s41, s41, s45")
    A("  s_mov_b32 s18, s41")
    A("  s_waitcnt lgkmcnt(0)")
    A("  s_add_u32 s8, s4, s17")
    A("  s_addc_u32 s9, s5, 0")
    A("  s_and_b32 s9, s9, 0xffff")
    A("  s_add_u32 s12, s6, s17")
    A("  s_addc_u32 s13, s7, 0")
    A("  s_and_b32 s13, s13, 0xffff")
    A(f"  s_mov_b32 s10, {reg}")
    A("  s_mov_b32 s11, 0x20000")
    A("  s_mov_b32 s42, 0")
    nb = -(-reg // (W * B * 1024))
    uid = [0]
    def issue(X):
        uid[0] += 1
        A(f"  s_cmp_lg_u32 s42, {nb}")
        A(f"  s_cbranch_scc1 L_i{uid[0]}")
        A("  s_mov_b32 s8, s12")
        A("  s_mov_b32 s9, s13")
        A("  s_mov_b32 s18, s41")
        for j in range(4): A(f"  v_add_u32 v{210+j}, {vo[j]}, v201")
        A(f"L_i{uid[0]}:")
        nc = B // 4
        for c in range(nc):
            for j in range(4):
                s = 8 + 4 * B * X + 16 * c + 4 * j
                A(f"  buffer_load_dwordx4 v[{s}:{s+3}], v{210+j}, s[8:11], s18 offen {policy}")
            A(f"  s_add_u32 s18, s18, {4096 if c < nc - 1 else 4096 + (W - 1) * B * 1024}")
        A("  s_add_u32 s42, s42, 1")
        if rot:
            A(f"  s_and_b32 s18, s18, {reg-1}")
            A(f"  s_cmp_eq_u32 s42, {2*nb}")
            A("  s_cselect_b32 s10, 0, s10")
    issue(0)
    A("  s_mov_b32 m0, 0")
    A("  s_mov_b32 s22, 0")
    A("  s_mov_b32 s44, 0")
    A("  s_memrealtime s[74:75]")
    per = max(1, (2 * nb + 63) // 64)
    A("L_loop:")
    for X in range(2):
        A("  s_memrealtime s[88:89]")
        A("  s_waitcnt vmcnt(0)")
        for d_ in range(pre): A(f"  v_xor_b32 v7, v7, v{8 + 4*B*X + d_ % (4*B)}")
        if bar: A("  s_barrier")
        issue(1 - X)
        for d_ in range(post): A(f"  v_xor_b32 v7, v7, v{8 + 4*B*X + d_ % (4*B)}")
        A("  s_waitcnt lgkmcnt(0)")
        A("  s_cmp_lg_u32 s44, 0")
        A(f"  s_cbranch_scc1 L_s{X}")
        A("  v_writelane_b32 v250, s88, m0")
        A("  s_add_u32 m0, m0, 1")
        A(f"  s_mov_b32 s44, {per}")
        A(f"L_s{X}:")
        A("  s_sub_u32 s44, s44, 1")
        A("  s_add_u32 s22, s22, 1")
    A(f"  s_cmp_lt_u32 s22, {2*nb}")
    A("  s_cbranch_scc1 L_loop")
    A("  s_memrealtime s[76:77]")
    A("  s_memrealtime s[78:79]")
    A("  s_getreg_b32 s82, hwreg(HW_REG_HW_ID)")
    A("  s_getreg_b32 s83, hwreg(HW_REG_XCC_ID)")
    A("  s_waitcnt vmcnt(0) lgkmcnt(0)")
    footer(A, 256)
    return "\n".join(L) + "\n"

if __name__ == "__main__":
    B = dict(pre=96, post=30)
    cfgs = {"e_base": dict(B), "e_rot1": dict(B, rot=1), "e_rot1m7": dict(B, rot=1, rotmask=7), "e_rot1m3": dict(B, rot=1, rotmask=3),
            "e_rot2": dict(B, rot=2), "e_rot1s3": dict(B, rot=1, rotsh=3), "e_rot1m1": dict(B, rot=1, rotmask=1), "e_rot3": dict(B, rot=3)}
    names = []
    for n, c in cfgs.items():
        open(f"work/{n}.s", "w").write(gen(**c)); names.append(n)
    print(" ".join(f"work/{n}.s" for n in names))
    print(json.dumps(["work/bench5.py", "work/scrub.s", "work/g_base_st.s", "cdna_kernels/cdna_launch.py", "cdna_kernels/cdna_unwritten_srd_check.py"] + [f"work/{n}.s" for n in names]))
```
